```python
import torch

def _softmax(x, axis=-1):
    return torch.softmax(x, dim=axis)

def _gelu(x):
    return torch.nn.functional.gelu(x, approximate='tanh')

def _silu(x):
    return torch.nn.functional.silu(x)

def _sigmoid(x):
    return torch.sigmoid(x)

def _layernorm(x, axis=-1, eps=1e-05):
    m = x.mean(dim=axis, keepdim=True)
    v = x.var(dim=axis, keepdim=True, unbiased=False)
    return (x - m) / torch.sqrt(v + eps)

def _scatter_add(tgt, idx, src, axis=0):
    return tgt.clone().index_add_(axis, idx, src)

def _segment_sum(src, seg, n):
    out = torch.zeros((n,) + src.shape[1:], dtype=src.dtype)
    return out.index_add_(0, seg, src)

def _pad(x, pw):
    flat = tuple((v for pair in reversed(pw) for v in pair))
    return torch.nn.functional.pad(x, flat)
kernel_name = 'recurrent_scan__memory_aug_recurrent_mem_tr__dense_activation_gelu__prompt'

def setup_inputs():

    _w = lambda a: (lambda t: t.to(torch.bfloat16) if t.is_floating_point() else t)(torch.as_tensor(a))

    def _A_setup():
        B, S, Dm = (1, 2048, 640)
        H, Dh = (32, 192)
        M, seg = (8, 32)
        seg = min(seg, S)
        S = S // seg * seg
        return {'x': _w((lambda *s: torch.randn(*s, dtype=torch.bfloat16) * 0.1)(B, S, Dm)), 'mem0': _w((lambda *s: torch.randn(*s, dtype=torch.bfloat16) * 1.6)(B, M, Dm)), 'Wq': _w((lambda *s: torch.randn(*s, dtype=torch.bfloat16) * 0.8)(Dm, H, Dh) * Dm ** (-0.5)), 'Wk': _w((lambda *s: torch.randn(*s, dtype=torch.bfloat16) * 0.8)(Dm, H, Dh) * Dm ** (-0.5)), 'Wv': _w((lambda *s: torch.randn(*s, dtype=torch.bfloat16) * 1.6)(Dm, H, Dh) * Dm ** (-0.5)), 'Wo': _w((lambda *s: torch.randn(*s, dtype=torch.bfloat16) * 1.6)(H, Dh, Dm) * (H * Dh) ** (-0.5)), 'seg_len': seg}
    _A_in = _A_setup()

    def _B_setup():
        B, S, D, F = (1, 2048, 640, 1536)
        return {'x': _w((lambda *s: torch.randn(*s, dtype=torch.bfloat16) * 0.1)(B, S, D)), 'w1': _w((lambda *s: torch.randn(*s, dtype=torch.bfloat16) * 0.4)(D, F) * D ** (-0.5)), 'b1': _w((lambda *s: torch.randn(*s, dtype=torch.bfloat16) * 0.4)(F) * 0.01), 'w2': _w((lambda *s: torch.randn(*s, dtype=torch.bfloat16) * 0.4)(F, D) * F ** (-0.5)), 'b2': _w((lambda *s: torch.randn(*s, dtype=torch.bfloat16) * 0.4)(D) * 0.01)}
    _B_in = _B_setup()
    return {'A_x': _A_in['x'], 'A_mem0': _A_in['mem0'], 'A_Wq': _A_in['Wq'], 'A_Wk': _A_in['Wk'], 'A_Wv': _A_in['Wv'], 'A_Wo': _A_in['Wo'], 'A_seg_len': _A_in['seg_len'], 'B_x': _B_in['x'], 'B_w1': _B_in['w1'], 'B_b1': _B_in['b1'], 'B_w2': _B_in['w2'], 'B_b2': _B_in['b2']}

def reference(A_x, A_mem0, A_Wq, A_Wk, A_Wv, A_Wo, A_seg_len, B_x, B_w1, B_b1, B_w2, B_b2):

    def _A_ref(x, mem0, Wq, Wk, Wv, Wo, seg_len):
        B, S, Dm = x.shape
        H, Dh = (Wq.shape[1], Wq.shape[2])
        M = mem0.shape[1]
        scale = Dh ** (-0.5)
        n_seg = S // seg_len
        L = M + seg_len
        idx = torch.arange(L)
        mask = (idx[:, None] < M) | (idx[:, None] >= idx[None, :])
        mem = mem0
        outs = []
        for s in range(n_seg):
            xs = x[:, s * seg_len:(s + 1) * seg_len, :].clone()
            h = torch.concatenate([mem, xs], axis=1)
            q = torch.einsum('btd,dhe->bhte', h, Wq)
            k = torch.einsum('btd,dhe->bhte', h, Wk)
            v = torch.einsum('btd,dhe->bhte', h, Wv)
            scores = torch.einsum('bhqe,bhke->bhqk', q, k) * scale
            scores = torch.where(mask[None, None], scores, -1000000000.0)
            p = _softmax(scores, axis=-1)
            o = torch.einsum('bhqk,bhke->bhqe', p, v)
            o = torch.einsum('bhte,hed->btd', o, Wo)
            mem = o[:, :M, :].clone()
            outs.append(o[:, M:, :])
        return torch.concatenate(outs, axis=1)

    def _B_ref(x, w1, b1, w2, b2):
        h = torch.einsum('bsd,df->bsf', x, w1) + b1
        h = _gelu(h)
        return torch.einsum('bsf,fd->bsd', h, w2) + b2
    x = A_x
    xn = _layernorm(x, axis=-1)
    s = _A_ref(xn, A_mem0, A_Wq, A_Wk, A_Wv, A_Wo, A_seg_len)
    g = _silu(_B_ref(xn, B_w1, B_b1, B_w2, B_b2))
    return x + s * g
```

```python
import os
import layout as L

SPIN_LIMIT = 1 << 20
FORCE_FALLBACK = int(os.environ.get("FORCE_FALLBACK", "0"))
LAST = int(os.environ.get("LAST", "63"))
NORESET = int(os.environ.get("NORESET", "0"))

def k_rec(G):
    A, vr, ar, sr, hx, f2u = G.A, G.vr, G.ar, G.sr, G.hx, G.f2u
    unpack, LOG2E, SCALE = G.unpack, G.LOG2E, G.SCALE
    name = "rec_kernel"
    G.kernel_begin(name)
    done = A.new("rc_done")
    A("s_cmp_ge_u32 s2, 256")
    A("s_cbranch_scc1 %s" % done)
    for s, n in ((4, "Wq"), (6, "Wk"), (8, "Wv"), (10, "Wo"), (12, "dbg"), (14, "ws")):
        G.ldarg(s, n)
    A("s_waitcnt lgkmcnt(0)")
    G.srd(16, 4, 0, 640 * 12288)
    G.srd(20, 6, 0, 640 * 12288)
    G.srd(24, 8, 0, 640 * 12288)
    G.srd(28, 10, 0, 6144 * 1280)
    G.srd(32, 12, 0, 256)
    G.srd(36, 14, L.COMM, L.COMM_SZ)
    G.srd(40, 14, L.KB, 0x1800000)
    G.srd(44, 14, L.VTB, 0x1800000)
    G.srd(48, 14, L.KMB, 64 * 32 * 3072)
    G.srd(52, 14, L.VMTB, 64 * 32 * 3072)
    SX, SC, SMODE, SW, SH, SJ, SSTEP, SSPIN = 56, 57, 58, 59, 60, 61, 62, 63
    ROLE_LDS = 98304
    A("""v_lshrrev_b32 v1, 6, v0
         s_nop 0
         v_readfirstlane_b32 s%d, v1
         s_mov_b32 s%d, 0""" % (SW, SSPIN))
    A("s_getreg_b32 s64, hwreg(HW_REG_XCC_ID)")
    A("s_and_b32 s64, s64, 15")
    lreg = A.new("rc_regdone")
    A("s_cmp_lg_u32 s%d, 0" % SW)
    A("s_cbranch_scc1 %s" % lreg)
    A("""s_mov_b64 s[66:67], exec
         s_mov_b64 exec, 1
         v_mov_b32 v1, 1
         s_lshl_b32 s65, s64, 2
         v_mov_b32 v2, s65
         buffer_atomic_add v1, v2, s[32:35], 0 offen sc0
         s_waitcnt vmcnt(0)
         v_mov_b32 v3, 1
         v_mov_b32 v4, 64
         buffer_atomic_add v3, v4, s[32:35], 0 offen sc0
         s_waitcnt vmcnt(0)""")
    lp = A.new("rc_regpoll"); lpo = A.new("rc_regok")
    A.label(lp)
    A("""buffer_load_dword v5, v4, s[32:35], 0 offen sc1
         s_waitcnt vmcnt(0)
         v_cmp_le_u32 vcc, 256, v5
         s_cbranch_vccnz %s
         s_sleep 2
         s_add_u32 s%d, s%d, 1
         s_cmp_lt_u32 s%d, %d
         s_cbranch_scc1 %s""" % (lpo, SSPIN, SSPIN, SSPIN, SPIN_LIMIT, lp))
    A.label(lpo)
    A("""v_mov_b32 v4, 0
         buffer_load_dwordx4 v[8:11], v4, s[32:35], 0 offen sc1
         buffer_load_dwordx4 v[12:15], v4, s[32:35], 0 offen offset:16 sc1
         s_waitcnt vmcnt(0)
         v_xor_b32 v5, 32, v8""")
    for r in range(9, 16):
        A("v_xor_b32 v6, 32, v%d" % r)
        A("v_or_b32 v5, v5, v6")
    if FORCE_FALLBACK:
        A("v_mov_b32 v5, 1")
    A("""v_mov_b32 v2, v1
         v_mov_b32 v4, v5
         v_mov_b32 v6, %d
         ds_write_b96 v6, v[2:4]
         s_waitcnt lgkmcnt(0)
         s_mov_b64 exec, s[66:67]""" % ROLE_LDS)
    A.label(lreg)
    A("""s_barrier
         v_mov_b32 v6, %d
         ds_read_b96 v[2:4], v6
         s_waitcnt lgkmcnt(0)
         v_readfirstlane_b32 s65, v2
         v_readfirstlane_b32 s66, v3
         v_readfirstlane_b32 s67, v4
         s_nop 3""" % ROLE_LDS)
    A("""s_lshr_b32 s68, s66, 5
         s_and_b32 s69, s66, 31
         s_cmp_eq_u32 s67, 0
         s_cselect_b32 s%d, s64, s68
         s_cselect_b32 s%d, s65, s69
         s_cselect_b32 s%d, 0, 1
         s_cmp_ge_u32 s%d, 4
         s_cbranch_scc1 %s""" % (SX, SC, SMODE, SX, done))
    A("""s_lshr_b32 s%d, s%d, 2
         s_lshl_b32 s64, s%d, 3
         s_add_u32 s%d, s%d, s64
         s_and_b32 s%d, s%d, 3""" % (SH, SC, SX, SH, SH, SJ, SC))
    VI, VG, VI7, VL = 1, 2, 3, 4
    A("""v_and_b32 v%d, 15, v0
         v_bfe_u32 v%d, v0, 4, 2
         v_and_b32 v%d, 7, v0
         v_and_b32 v%d, 63, v0""" % (VI, VG, VI7, VL))
    TMP = 64
    WO = 160
    A.c("weight load")
    A("s_mul_i32 s64, s%d, 24576" % SW)
    A("v_lshl_add_u32 v5, v%d, 4, s64" % VL)
    A("""v_lshrrev_b32 v6, 2, v%d
         v_lshl_add_u32 v7, v%d, 3, v6
         v_mul_u32_u24 v7, 96, v7
         v_and_b32 v8, 3, v%d
         v_lshl_add_u32 v7, v8, 3, v7
         v_add_u32 v7, s64, v7
         v_lshl_add_u32 v9, v%d, 2, v6
         v_lshlrev_b32 v9, 6, v9
         v_lshl_add_u32 v9, v8, 3, v9
         v_add_u32 v9, s64, v9""" % (VI, VG, VI, VG))
    mg = G.magic(6, 959, 16)
    GO = 16
    for n in range(15):
        A("v_add_u32 v10, %d, v%d" % (64 * n, VL))
        A("v_mul_u32_u24 v11, %d, v10" % mg)
        A("v_lshrrev_b32 v11, 16, v11")
        A("v_mul_u32_u24 v12, 6, v11")
        A("v_sub_u32 v12, v10, v12")
        A("v_mul_u32_u24 v%d, 12288, v11" % (GO + n))
        A("v_lshl_add_u32 v%d, v12, 4, v%d" % (GO + n, GO + n))
    A("""s_mul_i32 s65, s%d, %d
         s_mul_i32 s66, s%d, 384
         s_add_u32 s65, s65, s66
         s_mul_i32 s66, s%d, 96
         s_add_u32 s65, s65, s66""" % (SW, 160 * 12288, SH, SJ))
    for mat in range(3):
        for n in range(15):
            A("buffer_load_dwordx4 %s, v%d, s[%d:%d], s65 offen" % (vr(TMP + 4 * n, 4), GO + n, 16 + 4 * mat, 19 + 4 * mat))
        for n in range(15):
            A("s_waitcnt vmcnt(%d)" % (14 - n))
            A("ds_write_b128 v5, %s offset:%d" % (vr(TMP + 4 * n, 4), n * 1024))
        A("s_waitcnt lgkmcnt(0)")
        cnt = 0
        for t in range(3):
            for ks in range(5):
                f = (mat * 3 + t) * 5 + ks
                for h in range(2):
                    A("ds_read_b64_tr_b16 %s, v7 offset:%d" % (ar(4 * f + 2 * h, 2), ks * 3072 + h * 384 + t * 32))
                    cnt += 1
                    if cnt % 12 == 0:
                        A("s_waitcnt lgkmcnt(0)")
        A("s_waitcnt lgkmcnt(0)")
    lnw = A.new("rc_nowo")
    A("s_cmp_ge_u32 s%d, 20" % SC)
    A("s_cbranch_scc1 %s" % lnw)
    A("""v_lshrrev_b32 v10, 2, v%d
         v_mul_u32_u24 v10, 1280, v10
         v_and_b32 v11, 3, v%d
         v_lshl_add_u32 v10, v11, 4, v10
         s_mul_i32 s65, s%d, %d
         s_mul_i32 s66, s%d, %d
         s_add_u32 s65, s65, s66
         s_lshl_b32 s66, s%d, 6
         s_add_u32 s65, s65, s66""" % (VL, VL, SX, 1536 * 1280, SW, 384 * 1280, SC))
    for n in range(24):
        A("buffer_load_dwordx4 %s, v10, s[28:31], s65 offen" % vr(TMP + 4 * n, 4))
        A("s_add_u32 s65, s65, 20480")
    for n in range(24):
        A("s_waitcnt vmcnt(%d)" % (23 - n))
        A("ds_write_b128 v5, %s offset:%d" % (vr(TMP + 4 * n, 4), n * 1024))
        if n == 11:
            A("s_waitcnt lgkmcnt(0)")
    A("s_waitcnt lgkmcnt(0)")
    cnt = 0
    for kk in range(12):
        for nt in range(2):
            for h in range(2):
                A("ds_read_b64_tr_b16 %s, v9 offset:%d" % (vr(WO + (kk * 2 + nt) * 4 + 2 * h, 2), kk * 2048 + h * 1024 + nt * 32))
                cnt += 1
                if cnt % 12 == 0:
                    A("s_waitcnt lgkmcnt(0)")
    A("s_waitcnt lgkmcnt(0)")
    A.label(lnw)
    A("s_barrier")
    vD, vRW, vRR, vAst, vAld, vBst, vBld, vBld2, vCst, vCld, vDst, vKx, vVx, vKM, vVM, vRO, vGM = range(5, 22)
    A.c("addresses")
    A("v_lshlrev_b32 v%d, 7, v%d" % (vGM, VG))
    A("v_lshl_add_u32 v%d, v%d, 4, v%d" % (vGM, VI7, vGM))
    A("""s_mul_i32 s64, s%d, 10240
         s_mul_i32 s65, s%d, 2560
         s_add_u32 s64, s64, s65
         s_add_u32 s64, s64, %d
         v_add_u32 v%d, s64, v%d""" % (SX, SW, L.RD, vD, vGM))
    A("s_mul_i32 s64, s%d, 6144" % SW)
    A("v_lshl_add_u32 v%d, v%d, 4, s64" % (vRW, VL))
    A("v_lshlrev_b32 v%d, 4, v%d" % (vRR, VL))
    A("""s_lshl_b32 s64, s%d, 6
         s_add_u32 s64, s64, s%d
         s_mul_i32 s64, s64, 1536
         s_lshl_b32 s65, s%d, 9
         s_add_u32 s65, s65, s64
         s_add_u32 s65, s65, %d
         v_add_u32 v%d, s65, v%d
         s_lshl_b32 s64, s%d, 6
         s_and_b32 s65, s%d, 28
         s_add_u32 s64, s64, s65
         s_mul_i32 s64, s64, 1536
         s_add_u32 s64, s64, %d
         v_lshrrev_b32 v%d, 3, v%d
         v_mul_u32_u24 v%d, 3072, v%d
         v_add_u32 v%d, v%d, v%d
         v_add_u32 v%d, s64, v%d""" % (SX, SC, SW, L.RA, vAst, vGM, SX, SC, L.RA, vAld, VI, vAld, vAld, vAld, vAld, vGM, vAld, vAld))
    A("s_mul_i32 s64, s%d, 49152" % SX)
    A("s_add_u32 s64, s64, %d" % L.RB)
    A("v_mov_b32 v%d, v%d" % (vBst, vGM))
    for t in range(3):
        A("""s_mul_i32 s65, s%d, 3
             s_add_u32 s65, s65, %d
             s_lshr_b32 s66, s65, 1
             s_lshl_b32 s66, s66, 9
             s_and_b32 s65, s65, 1
             s_lshl_b32 s65, s65, 3
             s_add_u32 s66, s66, s65
             s_add_u32 s%d, s66, s64""" % (SC, t, 70 + t))
    A("""s_mul_i32 s65, s%d, 6144
         s_add_u32 s65, s65, s64
         v_add_u32 v%d, s65, v%d
         v_add_u32 v%d, 4096, v%d""" % (SW, vBld, vGM, vBld2, vBld))
    A("""v_lshrrev_b32 v%d, 3, v%d
         v_lshl_add_u32 v%d, v%d, 9, v%d
         s_lshl_b32 s64, s%d, 12
         s_add_u32 s64, s64, %d
         v_add_u32 v%d, s64, v%d
         s_lshl_b32 s65, s%d, 10
         v_add_u32 v%d, s65, v%d""" % (vCld, VI, vCld, vCld, vGM, SC, L.RC, vCld, vCld, SX, vCst, vCld))
    A("""v_lshrrev_b32 v%d, 3, v%d
         v_lshlrev_b32 v%d, 1, v%d
         v_lshrrev_b32 v22, 1, v%d
         v_add_u32 v%d, v%d, v22
         v_lshlrev_b32 v%d, 7, v%d
         v_lshl_add_u32 v%d, v%d, 4, v%d
         v_and_b32 v22, 1, v%d
         v_lshl_add_u32 v%d, v22, 3, v%d
         s_mul_i32 s64, s%d, 10240
         s_lshl_b32 s65, s%d, 9
         s_add_u32 s64, s64, s65
         s_add_u32 s64, s64, %d
         v_add_u32 v%d, s64, v%d""" % (vDst, VI, vDst, vDst, VG, vDst, vDst, vDst, vDst, vDst, VI7, vDst, VG, vDst, vDst, SX, SC, L.RD, vDst, vDst))
    A("""s_sub_u32 s64, s%d, 1
         s_lshl_b32 s64, s64, 4
         s_and_b32 s64, s64, 31
         v_add_u32 v%d, s64, v%d
         v_mul_u32_u24 v%d, 384, v%d
         s_mul_i32 s65, s%d, 96
         v_lshl_add_u32 v22, v%d, 3, s65
         v_add_u32 v%d, v%d, v22""" % (SW, vKx, VI, vKx, vKx, SJ, VG, vKx, vKx))
    A("v_mul_u32_u24 v%d, 384, v%d" % (vKM, VI7))
    A("v_add_u32 v%d, v%d, v22" % (vKM, vKM))
    A("""s_mul_i32 s65, s%d, 48
         v_add_u32 v22, s65, v%d
         v_lshlrev_b32 v%d, 6, v22
         v_and_b32 v23, 1, v%d
         v_lshl_add_u32 v%d, v23, 4, v%d
         v_lshrrev_b32 v24, 1, v%d
         v_lshl_add_u32 v%d, v24, 3, v%d
         v_lshlrev_b32 v%d, 4, v22
         v_lshl_add_u32 v%d, v23, 3, v%d""" % (SJ, VI, vVx, VG, vVx, vVx, VG, vVx, vVx, vVM, vVM, vVM))
    A("""v_lshrrev_b32 v%d, 3, v%d
         v_lshlrev_b32 v%d, 10, v%d
         v_lshl_add_u32 v%d, v%d, 8, v%d
         v_lshl_add_u32 v%d, v%d, 4, v%d
         v_add_u32 v%d, 36864, v%d""" % (vRO, VI, vRO, vRO, vRO, VG, vRO, vRO, VI7, vRO, vRO, vRO))
    A("v_cmp_gt_u32 s[74:75], 2, v%d" % VG)
    SENT = 24
    for r in range(4):
        A("v_mov_b32 v%d, -1" % (SENT + r))
    NEG = 28
    A("v_mov_b32 v%d, %s" % (NEG, hx(f2u(-1e30))))
    A("s_mov_b32 s76, %s" % hx(f2u(SCALE)))
    A("s_mov_b32 s77, %s" % hx(f2u(LOG2E)))
    MB = 32
    KX = 52
    QB = 58
    AQ = 64
    AV = 88
    VX = 100
    T0 = 112
    A("s_mul_i32 s78, s%d, 12288" % SH)
    A("s_mul_i32 s79, s%d, 3072" % SH)
    A("s_mov_b32 s%d, 0" % SSTEP)

    def prefetch_kx():
        for q in range(3):
            A("buffer_load_dwordx2 %s, v%d, s[40:43], s78 offen offset:%d" % (vr(KX + 2 * q, 2), vKx, q * 32))
    def prefetch_vx():
        for t in range(3):
            for q in range(2):
                A("buffer_load_dwordx2 %s, v%d, s[44:47], s78 offen offset:%d" % (vr(VX + 4 * t + 2 * q, 2), vVx, t * 1024 + q * 32))
    prefetch_kx()
    prefetch_vx()
    A("s_add_u32 s78, s78, %d" % (32 * 12288))

    def dual_store(lines):
        if NORESET:
            lines = [x for x in lines if vr(SENT, 4) not in x and vr(SENT, 2) not in x]
        l1 = A.new("st_sc"); l2 = A.new("st_e")
        A("s_cmp_lg_u32 s%d, 0" % SMODE)
        A("s_cbranch_scc1 %s" % l1)
        for s in lines:
            A(s)
        A("s_branch %s" % l2)
        A.label(l1)
        for s in lines:
            A(s + " sc1")
        A.label(l2)

    def retry(lab):
        ok = A.new("ok")
        A("""s_cbranch_vccz %s
             s_add_u32 s%d, s%d, 1
             s_cmp_lt_u32 s%d, %d
             s_cbranch_scc1 %s""" % (ok, SSPIN, SSPIN, SSPIN, SPIN_LIMIT, lab))
        A.label(ok)

    def reduce4(dst, tiles, base, stride_w):
        n = 0
        for ti, t in enumerate(tiles):
            for w in range(4):
                A("ds_read_b128 %s, v%d offset:%d" % (vr(T0 + 16 * ti + 4 * w, 4), vRR, base + w * stride_w + t * 1024))
                n += 1
        for ti in range(len(tiles)):
            A("s_waitcnt lgkmcnt(%d)" % (4 * (len(tiles) - 1 - ti)))
            b = T0 + 16 * ti
            for r in range(4):
                A("v_add_f32 v%d, v%d, v%d" % (b + r, b + r, b + 4 + r))
                A("v_add_f32 v%d, v%d, v%d" % (b + 8 + r, b + 8 + r, b + 12 + r))
            for r in range(4):
                A("v_add_f32 v%d, v%d, v%d" % (b + r, b + r, b + 8 + r))
            A("v_cvt_pk_bf16_f32 v%d, v%d, v%d" % (dst + 2 * ti, b, b + 1))
            A("v_cvt_pk_bf16_f32 v%d, v%d, v%d" % (dst + 2 * ti + 1, b + 2, b + 3))

    loop = A.new("rc_loop")
    A.label(loop)
    A("""s_and_b32 s64, s%d, 1
         s_xor_b32 s65, s64, 1
         s_mul_i32 s80, s64, 49152
         s_mul_i32 s81, s65, 49152
         s_mul_i32 s82, s64, 24576
         s_mul_i32 s83, s65, 24576
         s_mul_i32 s84, s64, 40960
         s_mul_i32 s85, s65, 40960
         s_and_b32 s64, s%d, 3
         s_mul_i32 s86, s64, 81920
         s_add_u32 s64, s%d, 2
         s_and_b32 s64, s64, 3
         s_mul_i32 s87, s64, 81920""" % (SSTEP, SSTEP, SSTEP))
    ld = A.new("rc_ld")
    A.label(ld)
    for ks in range(5):
        A("buffer_load_dwordx4 %s, v%d, s[36:39], s85 offen offset:%d sc1" % (vr(MB + 4 * ks, 4), vD, ks * 512))
    for ks in range(5):
        A("s_waitcnt vmcnt(%d)" % (4 - ks))
        for t in range(6):
            f = t * 5 + ks
            c = "0" if ks == 0 else vr(AQ + 4 * t, 4)
            A("v_mfma_f32_16x16x32_bf16 %s, %s, %s, %s" % (vr(AQ + 4 * t, 4), ar(4 * f, 4), vr(MB + 4 * ks, 4), c))
    A("s_nop 7")
    A("v_cmp_u_f32 vcc, v%d, v%d" % (AQ, AQ + 20))
    retry(ld)
    for t in range(6):
        A("ds_write_b128 v%d, %s offset:%d" % (vRW, vr(AQ + 4 * t, 4), t * 1024))
    A("s_waitcnt lgkmcnt(0)")
    A("s_barrier")
    lw3 = A.new("rc_w3"); lv = A.new("rc_v"); lnk = A.new("rc_nokm")
    A("s_cmp_eq_u32 s%d, 3" % SW)
    A("s_cbranch_scc1 %s" % lw3)
    reduce4(QB, [0, 1, 2], 0, 6144)
    A("s_cmp_lg_u32 s%d, 0" % SW)
    A("s_cbranch_scc1 %s" % lnk)
    reduce4(KX, [3, 4, 5], 0, 6144)
    A.label(lnk)
    A("s_waitcnt vmcnt(0)")
    A("s_nop 1")
    A("v_mfma_f32_16x16x32_bf16 %s, %s, %s, 0" % (vr(T0, 4), vr(KX, 4), vr(QB, 4)))
    A("s_nop 7")
    A("v_mfma_f32_16x16x16_bf16 %s, %s, %s, %s" % (vr(T0, 4), vr(KX + 4, 2), vr(QB + 4, 2), vr(T0, 4)))
    A("s_nop 7")
    dual_store(["buffer_store_dwordx4 %s, v%d, s[36:39], s80 offen" % (vr(T0, 4), vAst),
                "buffer_store_dwordx4 %s, v%d, s[36:39], s81 offen" % (vr(SENT, 4), vAst)])
    lnp = A.new("rc_nopf")
    A("s_cmp_eq_u32 s%d, 0" % SW)
    A("s_cbranch_scc1 %s" % lv)
    prefetch_kx()
    A("s_branch %s" % lv)
    A.label(lw3)
    reduce4(QB, [3, 4, 5], 0, 6144)
    for t in range(3):
        A("buffer_store_dwordx2 %s, v%d, s[48:51], s79 offen offset:%d" % (vr(QB + 2 * t, 2), vKM, t * 32))
    A.label(lv)
    for ks in range(5):
        for t in range(3):
            f = (6 + t) * 5 + ks
            c = "0" if ks == 0 else vr(AV + 4 * t, 4)
            A("v_mfma_f32_16x16x32_bf16 %s, %s, %s, %s" % (vr(AV + 4 * t, 4), vr(MB + 4 * ks, 4), ar(4 * f, 4), c))
    A("s_nop 7")
    A("s_mul_i32 s64, s%d, 3072" % SW)
    A("v_add_u32 v22, s64, v%d" % vRR)
    for t in range(3):
        A("ds_write_b128 v22, %s offset:%d" % (vr(AV + 4 * t, 4), 24576 + t * 1024))
    A("s_waitcnt lgkmcnt(0)")
    A("s_barrier")
    lred = A.new("rc_red")
    A("s_cmp_lg_u32 s%d, 3" % SW)
    A("s_cbranch_scc1 %s" % lred)
    VMO = QB
    reduce4(VMO, [0, 1, 2], 24576, 3072)
    for t in range(3):
        A("buffer_store_dwordx2 %s, v%d, s[52:55], s79 offen offset:%d" % (vr(VMO + 2 * t, 2), vVM, t * 256))
    A("s_cmp_eq_u32 s%d, %d" % (SSTEP, LAST))
    A("s_cbranch_scc1 %s" % done)
    la = A.new("rc_la")
    A.label(la)
    SS = AQ
    for p in range(2):
        for t in range(3):
            A("buffer_load_dwordx4 %s, v%d, s[36:39], s80 offen offset:%d sc1" % (vr(T0 + 12 * p + 4 * t, 4), vAld, p * 1536 + t * 512))
    A("s_waitcnt vmcnt(0)")
    for r in range(12):
        A("v_add_f32 v%d, v%d, v%d" % (SS + r, T0 + r, T0 + 12 + r))
    A("s_nop 1")
    for r in range(12):
        A("v_add_f32_dpp v%d, v%d, v%d row_ror:8 row_mask:0xf bank_mask:0xf" % (T0 + r, SS + r, SS + r))
    A("v_add_f32 v22, v%d, v%d" % (T0, T0 + 1))
    for r in range(2, 12):
        A("v_add_f32 v22, v22, v%d" % (T0 + r))
    A("v_cmp_u_f32 vcc, v22, v22")
    retry(la)
    for p in range(6):
        a, b = SS + 2 * p, SS + 2 * p + 1
        A("v_cvt_pk_bf16_f32 v22, v%d, v%d" % (T0 + 2 * p, T0 + 2 * p + 1))
        unpack(a, b, 22)
        A("v_mul_f32 v%d, s76, v%d" % (a, a))
        A("v_mul_f32 v%d, s76, v%d" % (b, b))
        A("v_cvt_pk_bf16_f32 v22, v%d, v%d" % (a, b))
        unpack(a, b, 22)
    for r in range(4):
        A("v_cndmask_b32 v%d, v%d, v%d, s[74:75]" % (SS + r, NEG, SS + r))
    A("v_max3_f32 v22, v%d, v%d, v%d" % (SS, SS + 1, SS + 2))
    for p in range(3, 11, 2):
        A("v_max3_f32 v22, v22, v%d, v%d" % (SS + p, SS + p + 1))
    A("v_max_f32 v22, v22, v%d" % (SS + 11))
    def xred(op):
        A("""v_mov_b32 v23, v22
             s_nop 1
             v_permlane16_swap_b32 v22, v23
             s_nop 1
             %s v22, v22, v23
             v_mov_b32 v23, v22
             s_nop 1
             v_permlane32_swap_b32 v22, v23
             s_nop 1
             %s v22, v22, v23""" % (op, op))
    xred("v_max_f32")
    A("v_mul_f32 v22, %s, v22" % hx(f2u(-LOG2E)))
    for r in range(12):
        A("v_fma_f32 v%d, v%d, s77, v22" % (SS + r, SS + r))
        A("v_exp_f32 v%d, v%d" % (SS + r, SS + r))
    A("s_nop 0")
    A("v_add_f32 v22, v%d, v%d" % (SS, SS + 1))
    for r in range(2, 12):
        A("v_add_f32 v22, v22, v%d" % (SS + r))
    xred("v_add_f32")
    A("v_rcp_f32 v22, v22")
    A("s_nop 0")
    for r in range(12):
        A("v_mul_f32 v%d, v%d, v22" % (SS + r, SS + r))
    PP = T0
    A("v_cvt_pk_bf16_f32 v%d, v%d, v%d" % (PP, SS, SS + 1))
    A("v_cvt_pk_bf16_f32 v%d, v%d, v%d" % (PP + 1, SS + 2, SS + 3))
    for q in range(4):
        A("v_cvt_pk_bf16_f32 v%d, v%d, v%d" % (PP + 4 + q, SS + 4 + 2 * q, SS + 5 + 2 * q))
    OO = T0 + 8
    A("s_nop 1")
    for t in range(3):
        A("v_mfma_f32_16x16x32_bf16 %s, %s, %s, 0" % (vr(OO + 4 * t, 4), vr(VX + 4 * t, 4), vr(PP + 4, 4)))
    A("s_nop 5")
    for t in range(3):
        A("v_mfma_f32_16x16x16_bf16 %s, %s, %s, %s" % (vr(OO + 4 * t, 4), vr(VMO + 2 * t, 2), vr(PP, 2), vr(OO + 4 * t, 4)))
    A("""s_add_u32 s64, s70, s82
         s_add_u32 s65, s71, s82
         s_add_u32 s66, s72, s82
         s_add_u32 s67, s70, s83
         s_add_u32 s68, s71, s83
         s_add_u32 s69, s72, s83
         s_nop 3""")
    OP = T0 + 24
    for t in range(3):
        A("v_cvt_pk_bf16_f32 v%d, v%d, v%d" % (OP + 2 * t, OO + 4 * t, OO + 4 * t + 1))
        A("v_cvt_pk_bf16_f32 v%d, v%d, v%d" % (OP + 2 * t + 1, OO + 4 * t + 2, OO + 4 * t + 3))
        A("v_min_u32 v%d, -2, v%d" % (OP + 2 * t, OP + 2 * t))
        A("v_min_u32 v%d, -2, v%d" % (OP + 2 * t + 1, OP + 2 * t + 1))
    dual_store(["buffer_store_dwordx2 %s, v%d, s[36:39], s%d offen" % (vr(OP + 2 * t, 2), vBst, 64 + t) for t in range(3)] +
               ["buffer_store_dwordx2 %s, v%d, s[36:39], s%d offen" % (vr(SENT, 2), vBst, 67 + t) for t in range(3)])
    prefetch_vx()
    A.label(lred)
    A("s_cmp_eq_u32 s%d, %d" % (SSTEP, LAST))
    A("s_cbranch_scc1 %s" % done)
    lnext = A.new("rc_next")
    A("s_cmp_ge_u32 s%d, 20" % SC)
    A("s_cbranch_scc1 %s" % lnext)
    lb = A.new("rc_lb")
    A.label(lb)
    for kk in range(12):
        A("buffer_load_dwordx4 %s, v%d, s[36:39], s82 offen offset:%d sc1" % (vr(T0 + 4 * kk, 4), vBld if kk < 8 else vBld2, (kk % 8) * 512))
    RR = AQ
    for kk in range(12):
        A("s_waitcnt vmcnt(%d)" % (11 - kk))
        for nt in range(2):
            c = "0" if kk == 0 else vr(RR + 4 * nt, 4)
            A("v_mfma_f32_16x16x32_bf16 %s, %s, %s, %s" % (vr(RR + 4 * nt, 4), vr(WO + (kk * 2 + nt) * 4, 4), vr(T0 + 4 * kk, 4), c))
    A("s_nop 7")
    A("v_cmp_u_f32 vcc, v%d, v%d" % (RR, RR + 4))
    retry(lb)
    A("s_lshl_b32 s64, s%d, 11" % SW)
    A("v_add_u32 v22, s64, v%d" % vRR)
    for nt in range(2):
        A("ds_write_b128 v22, %s offset:%d" % (vr(RR + 4 * nt, 4), 36864 + nt * 1024))
    A("s_waitcnt lgkmcnt(0)")
    A("s_barrier")
    A("s_cmp_lg_u32 s%d, 0" % SW)
    A("s_cbranch_scc1 %s" % lnext)
    for w in range(4):
        A("ds_read_b128 %s, v%d offset:%d" % (vr(T0 + 4 * w, 4), vRO, w * 2048))
    A("s_waitcnt lgkmcnt(0)")
    for r in range(4):
        A("v_add_f32 v%d, v%d, v%d" % (T0 + r, T0 + r, T0 + 4 + r))
        A("v_add_f32 v%d, v%d, v%d" % (T0 + 8 + r, T0 + 8 + r, T0 + 12 + r))
    for r in range(4):
        A("v_add_f32 v%d, v%d, v%d" % (T0 + r, T0 + r, T0 + 8 + r))
    A("buffer_store_dwordx4 %s, v%d, s[36:39], s86 offen sc1" % (vr(T0, 4), vCst))
    A("buffer_store_dwordx4 %s, v%d, s[36:39], s87 offen sc1" % (vr(SENT, 4), vCst))
    lc = A.new("rc_lc")
    A.label(lc)
    for xx in range(4):
        A("buffer_load_dwordx4 %s, v%d, s[36:39], s86 offen offset:%d sc1" % (vr(T0 + 16 + 4 * xx, 4), vCld, xx * 1024))
    A("s_waitcnt vmcnt(0)")
    b = T0 + 16
    for r in range(4):
        A("v_add_f32 v%d, v%d, v%d" % (b + r, b + r, b + 4 + r))
        A("v_add_f32 v%d, v%d, v%d" % (b + 8 + r, b + 8 + r, b + 12 + r))
    for r in range(4):
        A("v_add_f32 v%d, v%d, v%d" % (b + r, b + r, b + 8 + r))
    A("v_add_f32 v22, v%d, v%d" % (b, b + 1))
    A("v_add_f32 v23, v%d, v%d" % (b + 2, b + 3))
    A("v_cmp_u_f32 vcc, v22, v23")
    retry(lc)
    A("""v_cvt_pk_bf16_f32 v%d, v%d, v%d
         v_cvt_pk_bf16_f32 v%d, v%d, v%d
         v_min_u32 v%d, -2, v%d
         v_min_u32 v%d, -2, v%d""" % (T0, b, b + 1, T0 + 1, b + 2, b + 3, T0, T0, T0 + 1, T0 + 1))
    dual_store(["buffer_store_dwordx2 %s, v%d, s[36:39], s84 offen" % (vr(T0, 2), vDst),
                "buffer_store_dwordx2 %s, v%d, s[36:39], s85 offen" % (vr(SENT, 2), vDst)])
    A.label(lnext)
    A("""s_add_u32 s%d, s%d, 1
         s_add_u32 s78, s78, %d
         s_add_u32 s79, s79, %d
         s_branch %s""" % (SSTEP, SSTEP, 32 * 12288, 32 * 3072, loop))
    A.label(done)
    G.kernel_end(name, 256 + 180, 100, 256)
    return 98304 + 64
```

```python
XN   = 0
QB   = 0x0400000
KB   = 0x1C00000
VTB  = 0x3400000
H1   = 0x4C00000
GB   = 0x5200000
KMB  = 0x5600000
VMTB = 0x5C00000
OB   = 0x6200000
COMM = 0x7A00000
PART = 0x8000000
RA = 0
RA_SZ = 4*2*32*1536
RB = RA + RA_SZ
RB_SZ = 4*2*24576
RC = RB + RB_SZ
RC_SZ = 4*20*4*1024
RD = RC + RC_SZ
RD_SZ = 2*4*10240
FILL = RD + 4*10240
COMM_SZ = RD + RD_SZ
```

```python
import struct, sys
import layout as L

NAME = "recurrent_scan__memory_aug_recurrent_mem_tr__dense_activation_gelu__prompt"

def f2u(x):
    return struct.unpack("<I", struct.pack("<f", x))[0]

def hx(x):
    return "0x%08x" % (x & 0xffffffff)

class Asm:
    def __init__(self):
        self.lines = []
        self.uid = 0
    def __call__(self, s):
        for ln in s.split("\n"):
            ln = ln.strip()
            if ln:
                self.lines.append("    " + ln)
    def label(self, l):
        self.lines.append(l + ":")
    def c(self, s):
        self.lines.append("    ; " + s)
    def new(self, p="L"):
        self.uid += 1
        return "%s_%d" % (p, self.uid)
    def raw(self, s):
        self.lines.append(s)

A = Asm()
KD = []

def kernel_begin(name):
    A.raw(".p2align 8")
    A.raw(".globl %s" % name)
    A.raw(".type %s,@function" % name)
    A.label(name)

def kernel_end(name, vgpr, sgpr=100, accum=None):
    A("s_endpgm")
    if accum is None:
        accum = (vgpr + 3) // 4 * 4
    KD.append((name, vgpr, sgpr, accum))

ARG = dict(x=0, mem0=8, Wq=16, Wk=24, Wv=32, Wo=40, seg=48, Bx=56, w1=64, b1=72, w2=80, b2=88, out=96, dbg=104, ws=112)

def ldarg(sreg, name):
    A("s_load_dwordx2 s[%d:%d], s[0:1], %d" % (sreg, sreg + 1, ARG[name]))

def srd(d, p, off, size):
    if off:
        A("s_add_u32 s%d, s%d, %s" % (d, p, hx(off)))
        A("s_addc_u32 s%d, s%d, 0" % (d + 1, p + 1))
    else:
        A("s_mov_b32 s%d, s%d" % (d, p))
        A("s_mov_b32 s%d, s%d" % (d + 1, p + 1))
    A("s_mov_b32 s%d, %s" % (d + 2, hx(size)))
    A("s_mov_b32 s%d, 0x00020000" % (d + 3))

def vr(b, n=1):
    return "v%d" % b if n == 1 else "v[%d:%d]" % (b, b + n - 1)
def ar(b, n=1):
    return "a%d" % b if n == 1 else "a[%d:%d]" % (b, b + n - 1)
def sr(b, n=1):
    return "s%d" % b if n == 1 else "s[%d:%d]" % (b, b + n - 1)

def magic(div, maxv, shift):
    m = -(-(1 << shift) // div)
    for v in range(maxv + 1):
        assert (v * m) >> shift == v // div, (div, v)
    assert maxv * m < (1 << 32)
    return m

LOG2E = 1.4426950408889634

def k_ln():
    name = "ln_init_kernel"
    kernel_begin(name)
    done = A.new("ln_done"); init = A.new("ln_init")
    A("s_cmp_ge_u32 s2, 192")
    A("s_cbranch_scc1 %s" % done)
    ldarg(4, "x"); ldarg(6, "mem0"); ldarg(8, "ws")
    A("s_waitcnt lgkmcnt(0)")
    srd(12, 4, 0, 2048 * 1280)
    srd(16, 8, L.XN, 2048 * 1280)
    srd(20, 8, L.COMM, L.FILL)
    srd(24, 6, 0, 8 * 1280)
    srd(28, 8, L.COMM + L.FILL, 4 * 10240)
    A("s_cmp_ge_u32 s2, 128")
    A("s_cbranch_scc1 %s" % init)
    A("""v_lshrrev_b32 v1, 4, v0
         s_lshl_b32 s3, s2, 4
         v_add_u32 v1, s3, v1
         v_mul_u32_u24 v1, 1280, v1
         v_and_b32 v2, 15, v0
         v_lshl_add_u32 v1, v2, 4, v1""")
    for j in range(5):
        A("buffer_load_dwordx4 %s, v1, s[12:15], 0 offen offset:%d" % (vr(4 + 4 * j, 4), j * 256))
    A("s_waitcnt vmcnt(0)")
    for d in range(20):
        A("v_lshlrev_b32 v%d, 16, v%d" % (32 + 2 * d, 4 + d))
        A("v_and_b32 v%d, 0xffff0000, v%d" % (33 + 2 * d, 4 + d))
    def rowsum(reg):
        for r in (8, 4, 2, 1):
            A("s_nop 1")
            A("v_add_f32_dpp v%d, v%d, v%d row_ror:%d row_mask:0xf bank_mask:0xf" % (reg, reg, reg, r))
    A("v_add_f32 v2, v32, v33")
    for e in range(2, 40):
        A("v_add_f32 v2, v2, v%d" % (32 + e))
    rowsum(2)
    A("v_mul_f32 v2, %s, v2" % hx(f2u(1.0 / 640)))
    A("v_sub_f32 v3, v32, v2")
    A("v_mul_f32 v24, v3, v3")
    for e in range(1, 40):
        A("v_sub_f32 v3, v%d, v2" % (32 + e))
        A("v_fmac_f32 v24, v3, v3")
    rowsum(24)
    A("v_mul_f32 v24, %s, v24" % hx(f2u(1.0 / 640)))
    A("""v_cvt_pk_bf16_f32 v2, v2, v24
         v_and_b32 v24, 0xffff0000, v2
         v_lshlrev_b32 v2, 16, v2""")
    A("v_add_f32 v24, %s, v24" % hx(f2u(1e-5)))
    A("""v_cvt_pk_bf16_f32 v24, v24, v24
         v_lshlrev_b32 v24, 16, v24
         v_sqrt_f32 v24, v24
         s_nop 0
         v_cvt_pk_bf16_f32 v24, v24, v24
         v_lshlrev_b32 v24, 16, v24
         v_rcp_f32 v25, v24
         s_nop 0""")
    for d in range(20):
        a, b = 32 + 2 * d, 33 + 2 * d
        A("v_sub_f32 v%d, v%d, v2" % (a, a))
        A("v_sub_f32 v%d, v%d, v2" % (b, b))
        A("v_cvt_pk_bf16_f32 v3, v%d, v%d" % (a, b))
        A("v_lshlrev_b32 v%d, 16, v3" % a)
        A("v_and_b32 v%d, 0xffff0000, v3" % b)
        for r in (a, b):
            A("v_mul_f32 v26, v%d, v25" % r)
            A("v_fma_f32 v27, -v26, v24, v%d" % r)
            A("v_fma_f32 v%d, v27, v25, v26" % r)
        A("v_cvt_pk_bf16_f32 v%d, v%d, v%d" % (4 + d, a, b))
    for j in range(5):
        A("buffer_store_dwordx4 %s, v1, s[16:19], 0 offen offset:%d" % (vr(4 + 4 * j, 4), j * 256))
    A("s_branch %s" % done)
    A.label(init)
    A("""s_sub_u32 s3, s2, 128
         s_lshl_b32 s3, s3, 8
         v_add_u32 v1, s3, v0
         v_lshlrev_b32 v2, 4, v1
         v_mov_b32 v4, -1
         v_mov_b32 v5, -1
         v_mov_b32 v6, -1
         v_mov_b32 v7, -1""")
    npass = (L.FILL + 262143) // 262144
    for p in range(npass):
        A("s_mov_b32 s3, %s" % hx(p * 262144))
        A("buffer_store_dwordx4 v[4:7], v2, s[20:23], s3 offen")
    m = magic(640, 64 * 256, 24)
    A("s_mov_b32 s3, %s" % hx(m))
    A("""v_mul_lo_u32 v3, v1, s3
         v_lshrrev_b32 v3, 24, v3
         v_mul_u32_u24 v3, 640, v3
         v_sub_u32 v3, v1, v3
         v_and_b32 v8, 7, v3
         v_lshrrev_b32 v3, 3, v3
         v_mul_u32_u24 v8, 1280, v8
         v_lshl_add_u32 v3, v3, 4, v8
         buffer_load_dwordx4 v[8:11], v3, s[24:27], 0 offen
         s_waitcnt vmcnt(0)
         buffer_store_dwordx4 v[8:11], v2, s[28:31], 0 offen""")
    A.label(done)
    kernel_end(name, 72, 40)

class Gemm:
    def __init__(self, WM, WN, TM, TN, nstage):
        self.WM, self.WN, self.TM, self.TN, self.nstage = WM, WN, TM, TN, nstage
        self.NT = WM * WN * 64
        self.BM = WM * TM * 32
        self.BN = WN * TN * 32
        self.nA = self.BM * 8 // self.NT
        self.CB = self.BN // 8
        self.nB = 64 * self.CB // self.NT
        sb = self.BN * 2
        while (sb // 4) % 64 not in (16, 48):
            sb += 16
        self.SB = sb
        self.ASZ = self.BM * 128
        self.STG = self.ASZ + 64 * self.SB
        r = 2
        self.vAg = r; r += self.nA
        self.vBg = r; r += self.nB
        self.vAw = r; r += 2
        self.vBw = r; r += 2 * self.nB
        self.vAr = r; r += 8
        self.vBr = r; r += 2
        self.vwave = r; r += 1
        self.vt = r; r += 8
        r = (r + 3) // 4 * 4
        self.stg = r; r += 4 * (self.nA + self.nB)
        self.fa = r; r += 2 * TM * 4
        self.fb = r; r += 2 * TN * 4
        self.acc = r; r += TM * TN * 16
        self.nv = r

    def accr(self, mt, nt):
        return self.acc + (mt * self.TN + nt) * 16

    def setup(self):
        g = self
        t = g.vt
        A.c("gemm address setup")
        A("v_lshrrev_b32 v%d, 6, v0" % g.vwave)
        A("v_lshrrev_b32 v%d, 3, v0" % t)
        A("v_and_b32 v%d, 7, v0" % (t + 1))
        A("v_mul_lo_u32 v%d, v%d, s50" % (g.vAg, t))
        A("v_lshl_add_u32 v%d, v%d, 4, v%d" % (g.vAg, t + 1, g.vAg))
        A("s_mul_i32 s53, s50, %d" % (g.NT // 8))
        for j in range(1, g.nA):
            A("v_add_u32 v%d, s53, v%d" % (g.vAg + j, g.vAg + j - 1))
        A("v_bfe_u32 v%d, v%d, 1, 3" % (t + 2, t))
        A("v_xor_b32 v%d, v%d, v%d" % (t + 2, t + 2, t + 1))
        A("v_lshlrev_b32 v%d, 7, v%d" % (g.vAw, t))
        A("v_lshl_add_u32 v%d, v%d, 4, v%d" % (g.vAw, t + 2, g.vAw))
        A("v_add_u32 v%d, %d, v%d" % (g.vAw + 1, g.STG, g.vAw))
        mg = magic(g.CB, g.NT * g.nB, 16)
        for j in range(g.nB):
            A("v_add_u32 v%d, %d, v0" % (t, g.NT * j))
            A("v_mul_u32_u24 v%d, %d, v%d" % (t + 1, mg, t))
            A("v_lshrrev_b32 v%d, 16, v%d" % (t + 1, t + 1))
            A("v_mul_u32_u24 v%d, %d, v%d" % (t + 2, g.CB, t + 1))
            A("v_sub_u32 v%d, v%d, v%d" % (t + 2, t, t + 2))
            A("v_mul_lo_u32 v%d, v%d, s51" % (g.vBg + j, t + 1))
            A("v_lshl_add_u32 v%d, v%d, 4, v%d" % (g.vBg + j, t + 2, g.vBg + j))
            A("v_mul_u32_u24 v%d, %d, v%d" % (g.vBw + j, g.SB, t + 1))
            A("v_lshl_add_u32 v%d, v%d, 4, v%d" % (g.vBw + j, t + 2, g.vBw + j))
            A("v_add_u32 v%d, %d, v%d" % (g.vBw + j, g.ASZ, g.vBw + j))
            A("v_add_u32 v%d, %d, v%d" % (g.vBw + g.nB + j, g.STG, g.vBw + j))
        lw = {1: 0, 2: 1, 4: 2}[g.WN]
        A("v_lshrrev_b32 v%d, %d, v%d" % (t, lw, g.vwave))
        A("v_and_b32 v%d, %d, v%d" % (t + 1, g.WN - 1, g.vwave))
        A("v_and_b32 v%d, 31, v0" % (t + 2))
        A("v_bfe_u32 v%d, v0, 5, 1" % (t + 3))
        A("v_mul_u32_u24 v%d, %d, v%d" % (t + 4, g.TM * 32, t))
        A("v_add_u32 v%d, v%d, v%d" % (t + 4, t + 4, t + 2))
        A("v_bfe_u32 v%d, v%d, 1, 3" % (t + 5, t + 4))
        for kk in range(4):
            A("v_add_u32 v%d, %d, v%d" % (t + 6, 2 * kk, t + 3))
            A("v_xor_b32 v%d, v%d, v%d" % (t + 6, t + 6, t + 5))
            A("v_lshlrev_b32 v%d, 7, v%d" % (g.vAr + kk, t + 4))
            A("v_lshl_add_u32 v%d, v%d, 4, v%d" % (g.vAr + kk, t + 6, g.vAr + kk))
            A("v_add_u32 v%d, %d, v%d" % (g.vAr + 4 + kk, g.STG, g.vAr + kk))
        A("v_bfe_u32 v%d, v0, 2, 2" % (t + 2))
        A("v_lshl_add_u32 v%d, v%d, 3, v%d" % (t + 2, t + 3, t + 2))
        A("v_mul_u32_u24 v%d, %d, v%d" % (t + 2, g.SB, t + 2))
        A("v_mul_u32_u24 v%d, %d, v%d" % (t + 4, g.TN * 32, t + 1))
        A("v_bfe_u32 v%d, v0, 4, 1" % (t + 5))
        A("v_lshl_add_u32 v%d, v%d, 4, v%d" % (t + 4, t + 5, t + 4))
        A("v_and_b32 v%d, 3, v0" % (t + 5))
        A("v_lshl_add_u32 v%d, v%d, 2, v%d" % (t + 4, t + 5, t + 4))
        A("v_lshl_add_u32 v%d, v%d, 1, v%d" % (g.vBr, t + 4, t + 2))
        A("v_add_u32 v%d, %d, v%d" % (g.vBr, g.ASZ, g.vBr))
        A("v_add_u32 v%d, %d, v%d" % (g.vBr + 1, g.STG, g.vBr))

    def gloads(self):
        g = self
        for j in range(g.nA):
            A("buffer_load_dwordx4 %s, v%d, s[40:43], s48 offen" % (vr(g.stg + 4 * j, 4), g.vAg + j))
        for j in range(g.nB):
            A("buffer_load_dwordx4 %s, v%d, s[44:47], s49 offen" % (vr(g.stg + 4 * (g.nA + j), 4), g.vBg + j))
        A("s_add_u32 s48, s48, 128")
        A("s_add_u32 s49, s49, s52")

    def lwrites(self, p):
        g = self
        for j in range(g.nA):
            A("ds_write_b128 v%d, %s offset:%d" % (g.vAw + p, vr(g.stg + 4 * j, 4), j * (g.NT // 8) * 128))
        for j in range(g.nB):
            A("ds_write_b128 v%d, %s" % (g.vBw + p * g.nB + j, vr(g.stg + 4 * (g.nA + j), 4)))

    def freads(self, p, kk):
        g = self
        s = kk & 1
        for mt in range(g.TM):
            A("ds_read_b128 %s, v%d offset:%d" % (vr(g.fa + (s * g.TM + mt) * 4, 4), g.vAr + 4 * p + kk, mt * 4096))
        for nt in range(g.TN):
            for h in range(2):
                A("ds_read_b64_tr_b16 %s, v%d offset:%d" % (vr(g.fb + (s * g.TN + nt) * 4 + 2 * h, 2), g.vBr + p,
                                                           kk * 16 * g.SB + h * 4 * g.SB + nt * 64))

    def mfmas(self, kk, swapped):
        g = self
        s = kk & 1
        for mt in range(g.TM):
            for nt in range(g.TN):
                a = vr(g.fa + (s * g.TM + mt) * 4, 4)
                b = vr(g.fb + (s * g.TN + nt) * 4, 4)
                c = vr(g.accr(mt, nt), 16)
                if swapped:
                    A("v_mfma_f32_32x32x16_bf16 %s, %s, %s, %s" % (c, b, a, c))
                else:
                    A("v_mfma_f32_32x32x16_bf16 %s, %s, %s, %s" % (c, a, b, c))

    def stage(self, p, swapped, do_write, do_load):
        g = self
        nr = g.TM + 2 * g.TN
        nw = g.nA + g.nB
        g.freads(p, 0)
        g.freads(p, 1)
        A("s_waitcnt lgkmcnt(%d)" % nr)
        g.mfmas(0, swapped)
        g.freads(p, 2)
        A("s_waitcnt lgkmcnt(%d)" % nr)
        g.mfmas(1, swapped)
        g.freads(p, 3)
        A("s_waitcnt lgkmcnt(%d)" % nr)
        g.mfmas(2, swapped)
        if do_write:
            A("s_waitcnt vmcnt(0)")
            g.lwrites(1 - p)
            if do_load:
                g.gloads()
            A("s_waitcnt lgkmcnt(%d)" % nw)
        else:
            A("s_waitcnt lgkmcnt(0)")
        g.mfmas(3, swapped)
        A("s_waitcnt lgkmcnt(0)")
        A("s_barrier")

    def body(self, swapped):
        g = self
        assert g.nstage % 2 == 0 and g.nstage >= 4
        for i in range(g.TM * g.TN * 16):
            A("v_mov_b32 v%d, 0" % (g.acc + i))
        g.gloads()
        A("s_waitcnt vmcnt(0)")
        g.lwrites(0)
        g.gloads()
        A("s_waitcnt lgkmcnt(0)")
        A("s_barrier")
        loop = A.new("gloop")
        A("s_mov_b32 s54, %d" % (g.nstage // 2 - 1))
        A.label(loop)
        g.stage(0, swapped, True, True)
        g.stage(1, swapped, True, True)
        A("s_sub_u32 s54, s54, 1")
        A("s_cmp_lg_u32 s54, 0")
        A("s_cbranch_scc1 %s" % loop)
        g.stage(0, swapped, True, False)
        g.stage(1, swapped, False, False)
        A("s_nop 15")
        A("s_nop 3")

GELU_K1 = 2.0 * 0.7978845608028654 * LOG2E
GELU_K2 = GELU_K1 * 0.044715

def unpack(dst0, dst1, src):
    A("v_and_b32 v%d, 0xffff0000, v%d" % (dst1, src))
    A("v_lshlrev_b32 v%d, 16, v%d" % (dst0, src))

def act_pair(a0, a1, b0, b1, t, kind):
    A("v_cvt_pk_bf16_f32 v%d, v%d, v%d" % (t, a0, a1))
    unpack(a0, a1, t)
    A("v_add_f32 v%d, v%d, v%d" % (a0, a0, b0))
    A("v_add_f32 v%d, v%d, v%d" % (a1, a1, b1))
    A("v_cvt_pk_bf16_f32 v%d, v%d, v%d" % (t, a0, a1))
    unpack(a0, a1, t)
    for a, u in ((a0, t + 1), (a1, t + 2)):
        if kind == "gelu":
            A("v_mul_f32 v%d, v%d, v%d" % (u, a, a))
            A("v_fma_f32 v%d, v%d, s56, v%d" % (u, u, t + 3))
            A("v_mul_f32 v%d, v%d, v%d" % (u, u, a))
            A("v_exp_f32 v%d, -v%d" % (u, u))
        else:
            A("v_mul_f32 v%d, %s, v%d" % (u, hx(f2u(-LOG2E)), a))
            A("v_exp_f32 v%d, v%d" % (u, u))
    A("s_nop 0")
    for a, u in ((a0, t + 1), (a1, t + 2)):
        A("v_add_f32 v%d, 1.0, v%d" % (u, u))
        A("v_rcp_f32 v%d, v%d" % (u, u))
    A("s_nop 0")
    for a, u in ((a0, t + 1), (a1, t + 2)):
        A("v_mul_f32 v%d, v%d, v%d" % (a, a, u))
    A("v_cvt_pk_bf16_f32 v%d, v%d, v%d" % (t, a0, a1))

def k_gemm_a():
    name = "gemm_a_kernel"
    g = Gemm(4, 2, 2, 3, 10)
    ES = 400
    kernel_begin(name)
    done = A.new("ga_done")
    A("s_cmp_ge_u32 s2, 832")
    A("s_cbranch_scc1 %s" % done)
    ldarg(4, "Wq"); ldarg(6, "Wk"); ldarg(8, "Wv"); ldarg(10, "w1"); ldarg(12, "b1"); ldarg(14, "ws")
    A("s_mul_hi_u32 s16, s2, %s" % hx(-(-(1 << 32) // 104)))
    A("s_mul_i32 s17, s16, 104")
    A("s_sub_u32 s17, s2, s17")
    A("s_lshr_b32 s18, s17, 5")
    A("s_and_b32 s19, s17, 31")
    A("s_waitcnt lgkmcnt(0)")
    srd(40, 14, L.XN, 2048 * 1280)
    A("""s_cmp_eq_u32 s18, 1
         s_cselect_b32 s44, s6, s4
         s_cselect_b32 s45, s7, s5
         s_cmp_eq_u32 s18, 2
         s_cselect_b32 s44, s8, s44
         s_cselect_b32 s45, s9, s45
         s_cmp_eq_u32 s18, 3
         s_cselect_b32 s44, s10, s44
         s_cselect_b32 s45, s11, s45""")
    A("s_mov_b32 s46, %s" % hx(640 * 12288))
    A("s_mov_b32 s51, 12288")
    A("s_cselect_b32 s46, %s, s46" % hx(640 * 3072))
    A("s_mov_b32 s47, 0x00020000")
    A("s_cselect_b32 s51, 3072, s51")
    A("s_mov_b32 s50, 1280")
    A("s_lshl_b32 s52, s51, 6")
    A("s_mul_i32 s48, s16, %d" % (256 * 1280))
    A("s_mul_i32 s49, s19, 384")
    srd(60, 14, L.QB, 3 * 0x1800000)
    srd(64, 14, L.H1, 2048 * 3072)
    srd(68, 12, 0, 3072)
    g.setup()
    lv = A.new("ga_v"); lepi = A.new("ga_epi"); lh = A.new("ga_h1"); lcp = A.new("ga_copy")
    A("s_cmp_eq_u32 s18, 2")
    A("s_cbranch_scc1 %s" % lv)
    g.body(True)
    t = g.vt
    A("v_lshrrev_b32 v%d, 1, v%d" % (t, g.vwave))
    A("v_and_b32 v%d, 31, v0" % (t + 1))
    A("v_lshl_add_u32 v%d, v%d, 6, v%d" % (t, t, t + 1))
    A("v_mul_u32_u24 v%d, %d, v%d" % (t, ES, t))
    A("v_and_b32 v%d, 1, v%d" % (t + 1, g.vwave))
    A("v_mul_u32_u24 v%d, 96, v%d" % (t + 1, t + 1))
    A("v_bfe_u32 v%d, v0, 5, 1" % (t + 2))
    A("v_lshl_add_u32 v%d, v%d, 2, v%d" % (t + 1, t + 2, t + 1))
    A("v_lshl_add_u32 v%d, v%d, 1, v%d" % (t, t + 1, t))
    A("s_cmp_eq_u32 s18, 3")
    A("s_cbranch_scc1 %s" % lh)
    for mt in range(2):
        for nt in range(3):
            for a in range(4):
                r = g.accr(mt, nt) + 4 * a
                A("v_cvt_pk_bf16_f32 v%d, v%d, v%d" % (g.fa, r, r + 1))
                A("v_cvt_pk_bf16_f32 v%d, v%d, v%d" % (g.fa + 1, r + 2, r + 3))
                A("ds_write_b64 v%d, %s offset:%d" % (t, vr(g.fa, 2), mt * 32 * ES + nt * 64 + a * 16))
    A("s_branch %s" % lcp)
    A.label(lh)
    A("v_lshlrev_b32 v%d, 1, v%d" % (t + 1, t + 1))
    A("s_mul_i32 s55, s19, 384")
    for nt in range(3):
        for a in range(4):
            A("buffer_load_dwordx2 %s, v%d, s[68:71], s55 offen offset:%d" % (vr(g.stg + 2 * (nt * 4 + a), 2), t + 1, nt * 64 + a * 16))
    A("s_mov_b32 s56, %s" % hx(f2u(GELU_K2)))
    tt = g.fa
    A("v_mov_b32 v%d, %s" % (tt + 3, hx(f2u(GELU_K1))))
    A("v_mov_b32 v%d, %s" % (tt + 7, hx(f2u(GELU_K1))))
    A("s_waitcnt vmcnt(0)")
    for nt in range(3):
        for a in range(4):
            b = g.stg + 2 * (nt * 4 + a)
            unpack(tt + 8, tt + 9, b)
            unpack(tt + 10, tt + 11, b + 1)
            for mt in range(2):
                r = g.accr(mt, nt) + 4 * a
                act_pair(r, r + 1, tt + 8, tt + 9, tt, "gelu")
                act_pair(r + 2, r + 3, tt + 10, tt + 11, tt + 4, "gelu")
                A("v_mov_b32 v%d, v%d" % (tt + 12, tt))
                A("v_mov_b32 v%d, v%d" % (tt + 13, tt + 4))
                A("ds_write_b64 v%d, %s offset:%d" % (t, vr(tt + 12, 2), mt * 32 * ES + nt * 64 + a * 16))
    A.label(lcp)
    A("s_waitcnt lgkmcnt(0)")
    A("s_barrier")
    mg = magic(24, 767, 16)
    A("v_and_b32 v%d, 63, v0" % (t + 3))
    A("v_lshlrev_b32 v%d, 5, v%d" % (t + 4, g.vwave))
    for j in range(12):
        A("v_add_u32 v%d, %d, v%d" % (t, 64 * j, t + 3))
        A("v_mul_u32_u24 v%d, %d, v%d" % (t + 1, mg, t))
        A("v_lshrrev_b32 v%d, 16, v%d" % (t + 1, t + 1))
        A("v_mul_u32_u24 v%d, 24, v%d" % (t + 2, t + 1))
        A("v_sub_u32 v%d, v%d, v%d" % (t + 2, t, t + 2))
        A("v_add_u32 v%d, v%d, v%d" % (t + 1, t + 1, t + 4))
        A("v_mul_u32_u24 v%d, %d, v%d" % (t, ES, t + 1))
        A("v_lshl_add_u32 v%d, v%d, 4, v%d" % (t, t + 2, t))
        A("ds_read_b128 %s, v%d" % (vr(g.acc + 4 * j, 4), t))
        A("v_mul_u32_u24 v%d, 3072, v%d" % (g.acc + 48 + j, t + 1))
        A("v_lshl_add_u32 v%d, v%d, 4, v%d" % (g.acc + 48 + j, t + 2, g.acc + 48 + j))
    A("s_branch %s" % lepi)
    A.label(lv)
    g.body(False)
    A("v_lshrrev_b32 v%d, 1, v%d" % (t, g.vwave))
    A("v_mul_u32_u24 v%d, %d, v%d" % (t, 2 * 15360, t))
    A("v_and_b32 v%d, 1, v%d" % (t + 1, g.vwave))
    A("v_mul_u32_u24 v%d, 96, v%d" % (t + 1, t + 1))
    A("v_and_b32 v%d, 31, v0" % (t + 2))
    A("v_add_u32 v%d, v%d, v%d" % (t + 1, t + 1, t + 2))
    A("v_mul_u32_u24 v%d, 80, v%d" % (t + 1, t + 1))
    A("v_add_u32 v%d, v%d, v%d" % (t, t, t + 1))
    A("v_bfe_u32 v%d, v0, 5, 1" % (t + 2))
    A("v_lshl_add_u32 v%d, v%d, 4, v%d" % (t, t + 2, t))
    for mt in range(2):
        for nt in range(3):
            for Aa in range(2):
                r = g.accr(mt, nt) + 8 * Aa
                for q in range(4):
                    A("v_cvt_pk_bf16_f32 v%d, v%d, v%d" % (g.fa + q, r + 2 * q, r + 2 * q + 1))
                A("ds_write_b128 v%d, %s offset:%d" % (t, vr(g.fa, 4), mt * 15360 + nt * 32 * 80 + Aa * 32))
    A("s_waitcnt lgkmcnt(0)")
    A("s_barrier")
    A("v_and_b32 v%d, 63, v0" % (t + 3))
    A("v_mul_u32_u24 v%d, 15360, v%d" % (t + 4, g.vwave))
    A("v_lshrrev_b32 v%d, 2, v%d" % (t, t + 3))
    A("v_mul_u32_u24 v%d, 80, v%d" % (t, t))
    A("v_and_b32 v%d, 3, v%d" % (t + 1, t + 3))
    A("v_lshl_add_u32 v%d, v%d, 4, v%d" % (t, t + 1, t))
    A("v_add_u32 v%d, v%d, v%d" % (t, t, t + 4))
    for j in range(12):
        A("ds_read_b128 %s, v%d offset:%d" % (vr(g.acc + 4 * j, 4), t, j * 16 * 80))
        A("v_mov_b32 v%d, 0" % (g.acc + 48 + j))
    A.label(lepi)
    lh2 = A.new("ga_h1o")
    A("s_cmp_eq_u32 s18, 3")
    A("s_cbranch_scc1 %s" % lh2)
    A("v_and_b32 v%d, 63, v0" % (t + 3))
    A("s_lshl_b32 s55, s16, 3")
    A("v_add_u32 v%d, s55, v%d" % (t, g.vwave))
    A("v_lshlrev_b32 v%d, 5, v%d" % (t, t))
    A("v_add_u32 v%d, s19, v%d" % (t, t))
    A("v_mul_u32_u24 v%d, 12288, v%d" % (t, t))
    A("v_lshl_add_u32 v%d, v%d, 4, v%d" % (t, t + 3, t))
    A("s_mul_i32 s55, s18, %s" % hx(0x1800000))
    A("v_add_u32 v%d, 4096, v%d" % (t + 1, t))
    A("v_add_u32 v%d, 8192, v%d" % (t + 2, t))
    for j in range(12):
        A("s_waitcnt lgkmcnt(%d)" % (11 - j))
        A("buffer_store_dwordx4 %s, v%d, s[60:63], s55 offen offset:%d" % (vr(g.acc + 4 * j, 4), t + j // 4, (j % 4) * 1024))
    A("s_branch %s" % done)
    A.label(lh2)
    A("s_mul_i32 s55, s16, %d" % (256 * 3072))
    A("s_mul_i32 s56, s19, 384")
    A("s_add_u32 s55, s55, s56")
    for j in range(12):
        A("s_waitcnt lgkmcnt(%d)" % (11 - j))
        A("buffer_store_dwordx4 %s, v%d, s[64:67], s55 offen" % (vr(g.acc + 4 * j, 4), g.acc + 48 + j))
    A.label(done)
    kernel_end(name, g.nv, 80)
    return 2 * g.STG

def k_gemm_n640(which):
    name = "gemm_%s_kernel" % which
    isb = which == "b"
    nst = 24 if isb else 32
    g = Gemm(2, 2, 2, 2, nst)
    nwg = 80 if isb else 240
    kernel_begin(name)
    done = A.new("gn_done")
    A("s_cmp_ge_u32 s2, %d" % nwg)
    A("s_cbranch_scc1 %s" % done)
    ldarg(4, "w2" if isb else "Wo"); ldarg(6, "b2"); ldarg(14, "ws")
    A("s_mul_hi_u32 s16, s2, %s" % hx(-(-(1 << 32) // 5)))
    A("s_mul_i32 s17, s16, 5")
    A("s_sub_u32 s17, s2, s17")
    A("s_lshr_b32 s18, s16, 4")
    A("s_and_b32 s16, s16, 15")
    A("s_waitcnt lgkmcnt(0)")
    lda = 3072 if isb else 12288
    srd(40, 14, L.H1 if isb else L.OB, 2048 * lda)
    srd(44, 4, 0, (1536 if isb else 6144) * 1280)
    A("s_mov_b32 s50, %d" % lda)
    A("s_mov_b32 s51, 1280")
    A("s_mov_b32 s52, %d" % (64 * 1280))
    A("s_mul_i32 s48, s16, %d" % (128 * lda))
    A("s_mul_i32 s55, s18, 4096")
    A("s_add_u32 s48, s48, s55")
    A("s_mul_i32 s49, s18, %d" % (2048 * 1280))
    A("s_lshl_b32 s55, s17, 8")
    A("s_add_u32 s49, s49, s55")
    if isb:
        srd(60, 14, L.GB, 2048 * 1280)
        srd(68, 6, 0, 1280)
    else:
        srd(60, 14, L.PART, 3 * 2048 * 2560)
    g.setup()
    g.body(True)
    t = g.vt
    ES = 272 if isb else 528
    esz = 2 if isb else 4
    A("v_lshrrev_b32 v%d, 1, v%d" % (t, g.vwave))
    A("v_and_b32 v%d, 31, v0" % (t + 1))
    A("v_lshl_add_u32 v%d, v%d, 6, v%d" % (t, t, t + 1))
    A("v_mul_u32_u24 v%d, %d, v%d" % (t, ES, t))
    A("v_and_b32 v%d, 1, v%d" % (t + 1, g.vwave))
    A("v_lshlrev_b32 v%d, 6, v%d" % (t + 1, t + 1))
    A("v_bfe_u32 v%d, v0, 5, 1" % (t + 2))
    A("v_lshl_add_u32 v%d, v%d, 2, v%d" % (t + 1, t + 2, t + 1))
    A("v_lshl_add_u32 v%d, v%d, %d, v%d" % (t, t + 1, 1 if isb else 2, t))
    if isb:
        A("v_lshlrev_b32 v%d, 1, v%d" % (t + 1, t + 1))
        A("s_lshl_b32 s55, s17, 8")
        for nt in range(2):
            for a in range(4):
                A("buffer_load_dwordx2 %s, v%d, s[68:71], s55 offen offset:%d" % (vr(g.stg + 2 * (nt * 4 + a), 2), t + 1, nt * 64 + a * 16))
        tt = g.fa
        A("s_waitcnt vmcnt(0)")
        for nt in range(2):
            for a in range(4):
                b = g.stg + 2 * (nt * 4 + a)
                unpack(tt + 8, tt + 9, b)
                unpack(tt + 10, tt + 11, b + 1)
                for mt in range(2):
                    r = g.accr(mt, nt) + 4 * a
                    act_pair(r, r + 1, tt + 8, tt + 9, tt, "silu")
                    act_pair(r + 2, r + 3, tt + 10, tt + 11, tt + 4, "silu")
                    A("v_mov_b32 v%d, v%d" % (tt + 12, tt))
                    A("v_mov_b32 v%d, v%d" % (tt + 13, tt + 4))
                    A("ds_write_b64 v%d, %s offset:%d" % (t, vr(tt + 12, 2), mt * 32 * ES + nt * 64 + a * 16))
    else:
        for mt in range(2):
            for nt in range(2):
                for a in range(4):
                    r = g.accr(mt, nt) + 4 * a
                    A("ds_write_b128 v%d, %s offset:%d" % (t, vr(r, 4), mt * 32 * ES + nt * 128 + a * 32))
    A("s_waitcnt lgkmcnt(0)")
    A("s_barrier")
    CR = 16 if isb else 32
    lg = 4 if isb else 5
    nj = 128 * CR // 256
    rows_per_j = 256 // CR
    ldo = 1280 if isb else 2560
    A("v_lshrrev_b32 v%d, %d, v0" % (t + 1, lg))
    A("v_and_b32 v%d, %d, v0" % (t + 2, CR - 1))
    A("v_mul_u32_u24 v%d, %d, v%d" % (t, ES, t + 1))
    A("v_lshl_add_u32 v%d, v%d, 4, v%d" % (t, t + 2, t))
    A("v_mul_u32_u24 v%d, %d, v%d" % (t + 3, ldo, t + 1))
    A("v_lshl_add_u32 v%d, v%d, 4, v%d" % (t + 3, t + 2, t + 3))
    for j in range(nj):
        A("ds_read_b128 %s, v%d offset:%d" % (vr(g.acc + 4 * j, 4), t, j * rows_per_j * ES))
        if j == 14:
            A("s_waitcnt lgkmcnt(0)")
    A("s_mul_i32 s55, s16, %d" % (128 * ldo))
    A("s_mul_i32 s56, s17, %d" % (128 * esz))
    A("s_add_u32 s55, s55, s56")
    if not isb:
        A("s_mul_i32 s56, s18, %d" % (2048 * 2560))
        A("s_add_u32 s55, s55, s56")
    A("s_waitcnt lgkmcnt(0)")
    for j in range(nj):
        A("buffer_store_dwordx4 %s, v%d, s[60:63], s55 offen" % (vr(g.acc + 4 * j, 4), t + 3))
        A("s_add_u32 s55, s55, %d" % (rows_per_j * ldo))
    A.label(done)
    kernel_end(name, g.nv, 80)
    return 2 * g.STG

def k_final():
    name = "final_kernel"
    kernel_begin(name)
    done = A.new("fin_done")
    A("s_cmp_ge_u32 s2, 640")
    A("s_cbranch_scc1 %s" % done)
    ldarg(4, "x"); ldarg(6, "out"); ldarg(8, "ws")
    A("s_waitcnt lgkmcnt(0)")
    srd(12, 4, 0, 2048 * 1280)
    srd(16, 6, 0, 2048 * 1280)
    srd(20, 8, L.GB, 2048 * 1280)
    srd(24, 8, L.PART, 3 * 2048 * 2560)
    A("""s_lshl_b32 s3, s2, 8
         v_add_u32 v1, s3, v0
         v_lshlrev_b32 v2, 5, v1
         v_lshlrev_b32 v1, 4, v1""")
    A("s_mov_b32 s28, %s" % hx(2048 * 2560))
    A("s_mov_b32 s29, %s" % hx(2 * 2048 * 2560))
    A("""buffer_load_dwordx4 v[4:7], v2, s[24:27], 0 offen
         buffer_load_dwordx4 v[8:11], v2, s[24:27], 0 offen offset:16
         buffer_load_dwordx4 v[12:15], v2, s[24:27], s28 offen
         buffer_load_dwordx4 v[16:19], v2, s[24:27], s28 offen offset:16
         buffer_load_dwordx4 v[20:23], v2, s[24:27], s29 offen
         buffer_load_dwordx4 v[24:27], v2, s[24:27], s29 offen offset:16
         buffer_load_dwordx4 v[28:31], v1, s[12:15], 0 offen
         buffer_load_dwordx4 v[32:35], v1, s[20:23], 0 offen
         s_waitcnt vmcnt(0)""")
    for e in range(8):
        A("v_add_f32 v%d, v%d, v%d" % (4 + e, 4 + e, 12 + e))
        A("v_add_f32 v%d, v%d, v%d" % (4 + e, 4 + e, 20 + e))
    for d in range(4):
        a, b = 4 + 2 * d, 5 + 2 * d
        A("v_cvt_pk_bf16_f32 v36, v%d, v%d" % (a, b))
        unpack(a, b, 36)
        unpack(37, 38, 32 + d)
        A("v_mul_f32 v%d, v%d, v37" % (a, a))
        A("v_mul_f32 v%d, v%d, v38" % (b, b))
        A("v_cvt_pk_bf16_f32 v36, v%d, v%d" % (a, b))
        unpack(a, b, 36)
        unpack(37, 38, 28 + d)
        A("v_add_f32 v%d, v%d, v37" % (a, a))
        A("v_add_f32 v%d, v%d, v38" % (b, b))
        A("v_cvt_pk_bf16_f32 v%d, v%d, v%d" % (40 + d, a, b))
    A("buffer_store_dwordx4 v[40:43], v1, s[16:19], 0 offen")
    A.label(done)
    kernel_end(name, 44, 40)

SCALE = 192 ** (-0.5)

def k_attn():
    name = "attn_kernel"
    kernel_begin(name)
    done = A.new("at_done")
    A("s_cmp_ge_u32 s2, 512")
    A("s_cbranch_scc1 %s" % done)
    ldarg(8, "ws")
    A("s_waitcnt lgkmcnt(0)")
    srd(12, 8, L.QB, 0x1800000)
    srd(16, 8, L.KB, 0x1800000)
    srd(20, 8, L.VTB, 0x1800000)
    srd(24, 8, L.KMB, 64 * 32 * 3072)
    srd(28, 8, L.VMTB, 64 * 32 * 3072)
    srd(32, 8, L.OB, 2048 * 12288)
    A("""v_lshrrev_b32 v1, 6, v0
         s_lshl_b32 s3, s2, 2
         v_add_u32 v1, s3, v1
         v_and_b32 v2, 31, v0
         v_bfe_u32 v3, v0, 5, 1
         v_mul_u32_u24 v4, 12288, v1
         v_mul_u32_u24 v5, 384, v2
         v_add_u32 v5, v5, v4
         v_lshl_add_u32 v5, v3, 4, v5
         v_mul_u32_u24 v6, 3072, v1
         v_and_b32 v7, 7, v2
         v_mul_u32_u24 v7, 384, v7
         v_add_u32 v7, v7, v6
         v_lshl_add_u32 v7, v3, 4, v7
         v_lshl_add_u32 v8, v2, 6, v4
         v_lshl_add_u32 v8, v3, 4, v8
         v_add_u32 v9, 4096, v8
         v_add_u32 v10, 8192, v8
         v_lshl_add_u32 v11, v2, 4, v6
         v_lshl_add_u32 v11, v3, 3, v11""")
    Q, K, KM, VT, VM, SX, SM = 16, 64, 112, 160, 208, 220, 236
    for ks in range(12):
        A("buffer_load_dwordx4 %s, v5, s[12:15], 0 offen offset:%d" % (vr(Q + 4 * ks, 4), ks * 32))
        A("buffer_load_dwordx4 %s, v5, s[16:19], 0 offen offset:%d" % (vr(K + 4 * ks, 4), ks * 32))
        A("buffer_load_dwordx4 %s, v7, s[24:27], 0 offen offset:%d" % (vr(KM + 4 * ks, 4), ks * 32))
    for t in range(6):
        for a in range(2):
            A("buffer_load_dwordx4 %s, v%d, s[20:23], 0 offen offset:%d" % (vr(VT + 8 * t + 4 * a, 4), 8 + t // 2, (t % 2) * 2048 + a * 32))
        A("buffer_load_dwordx2 %s, v11, s[28:31], 0 offen offset:%d" % (vr(VM + 2 * t, 2), t * 512))
    for ks in range(12):
        A("s_waitcnt vmcnt(%d)" % (18 + 3 * (11 - ks)))
        cx = "0" if ks == 0 else vr(SX, 16)
        cm = "0" if ks == 0 else vr(SM, 16)
        A("v_mfma_f32_32x32x16_bf16 %s, %s, %s, %s" % (vr(SX, 16), vr(K + 4 * ks, 4), vr(Q + 4 * ks, 4), cx))
        A("v_mfma_f32_32x32x16_bf16 %s, %s, %s, %s" % (vr(SM, 16), vr(KM + 4 * ks, 4), vr(Q + 4 * ks, 4), cm))
    A("v_lshlrev_b32 v12, 2, v3")
    A("v_sub_u32 v12, v2, v12")
    A("v_mov_b32 v13, %s" % hx(f2u(-1e9)))
    A("s_mov_b32 s36, %s" % hx(f2u(SCALE)))
    A("s_nop 15")
    A("s_nop 3")
    regs = [SX + r for r in range(16)] + [SM + r for r in range(4)]
    for p in range(10):
        a, b = regs[2 * p], regs[2 * p + 1]
        A("v_cvt_pk_bf16_f32 v14, v%d, v%d" % (a, b))
        unpack(a, b, 14)
        A("v_mul_f32 v%d, s36, v%d" % (a, a))
        A("v_mul_f32 v%d, s36, v%d" % (b, b))
        A("v_cvt_pk_bf16_f32 v14, v%d, v%d" % (a, b))
        unpack(a, b, 14)
    for r in range(16):
        key = 8 * (r >> 2) + (r & 3)
        A("v_cmp_le_i32 vcc, %d, v12" % key)
        A("s_nop 1")
        A("v_cndmask_b32 v%d, v13, v%d, vcc" % (SX + r, SX + r))
    A("v_max3_f32 v14, v%d, v%d, v%d" % (regs[0], regs[1], regs[2]))
    for p in range(3, 19, 2):
        A("v_max3_f32 v14, v14, v%d, v%d" % (regs[p], regs[p + 1]))
    A("v_max_f32 v14, v14, v%d" % regs[19])
    A("""v_mov_b32 v15, v14
         s_nop 1
         v_permlane32_swap_b32 v14, v15
         s_nop 1
         v_max_f32 v14, v14, v15""")
    A("v_mul_f32 v14, %s, v14" % hx(f2u(-LOG2E)))
    A("s_mov_b32 s37, %s" % hx(f2u(LOG2E)))
    for r in regs:
        A("v_fma_f32 v%d, v%d, s37, v14" % (r, r))
        A("v_exp_f32 v%d, v%d" % (r, r))
    A("s_nop 0")
    A("v_add_f32 v14, v%d, v%d" % (regs[0], regs[1]))
    for r in regs[2:]:
        A("v_add_f32 v14, v14, v%d" % r)
    A("""v_mov_b32 v15, v14
         s_nop 1
         v_permlane32_swap_b32 v14, v15
         s_nop 1
         v_add_f32 v14, v14, v15
         v_rcp_f32 v14, v14
         s_nop 0""")
    for r in regs:
        A("v_mul_f32 v%d, v%d, v14" % (r, r))
    P = KM
    for p in range(10):
        A("v_cvt_pk_bf16_f32 v%d, v%d, v%d" % (P + p, regs[2 * p], regs[2 * p + 1]))
    O = Q
    A("s_waitcnt vmcnt(0)")
    A("s_nop 1")
    for t in range(6):
        o = vr(O + 16 * t, 16)
        A("v_mfma_f32_32x32x16_bf16 %s, %s, %s, 0" % (o, vr(VT + 8 * t, 4), vr(P, 4)))
        A("v_mfma_f32_32x32x16_bf16 %s, %s, %s, %s" % (o, vr(VT + 8 * t + 4, 4), vr(P + 4, 4), o))
    A("s_nop 11")
    for t in range(6):
        o = vr(O + 16 * t, 16)
        A("v_mfma_f32_32x32x8_bf16 %s, %s, %s, %s" % (o, vr(VM + 2 * t, 2), vr(P + 8, 2), o))
    A("""v_lshrrev_b32 v4, 5, v1
         v_lshl_add_u32 v4, v4, 5, v2
         v_mul_u32_u24 v4, 12288, v4
         v_and_b32 v5, 31, v1
         v_mul_u32_u24 v5, 384, v5
         v_add_u32 v4, v4, v5
         v_lshl_add_u32 v4, v3, 4, v4
         s_nop 15
         s_nop 3""")
    T = KM + 16
    for t in range(6):
        for pr in range(2):
            r = O + 16 * t + 8 * pr
            tt = T + 4 * ((2 * t + pr) % 4)
            for q in range(4):
                A("v_cvt_pk_bf16_f32 v%d, v%d, v%d" % (tt + q, r + 2 * q, r + 2 * q + 1))
            A("s_nop 1")
            A("v_permlane32_swap_b32 v%d, v%d" % (tt, tt + 2))
            A("v_permlane32_swap_b32 v%d, v%d" % (tt + 1, tt + 3))
            A("buffer_store_dwordx4 %s, v4, s[32:35], 0 offen offset:%d" % (vr(tt, 4), t * 64 + pr * 32))
    A.label(done)
    kernel_end(name, 252, 40)

from gen_rec import k_rec

def main():
    launches = []
    k_ln();                launches.append(("ln_init_kernel", 192, 256, 0))
    lds = k_gemm_a();      launches.append(("gemm_a_kernel", 832, 512, lds))
    lds = k_gemm_n640("b"); launches.append(("gemm_b_kernel", 80, 256, lds))
    lds = k_rec(sys.modules[__name__]); launches.append(("rec_kernel", 256, 256, lds))
    k_attn();              launches.append(("attn_kernel", 512, 256, 0))
    lds = k_gemm_n640("c"); launches.append(("gemm_c_kernel", 240, 256, lds))
    k_final();             launches.append(("final_kernel", 640, 256, 0))
    ref = open("cdna_kernels/%s.s.ref" % NAME).read().split("\n")
    head = []
    for ln in ref:
        if ln.startswith("; Override") or ln.startswith("; grid=") or "@launch" in ln:
            break
        head.append(ln)
    out = head[:]
    for (k, gx, bx, lds) in launches:
        out.append("; @launch kernel=%s grid=(%d,1,1) block=(%d,1,1) lds=%d" % (k, gx, bx, lds))
    out.append('.amdgcn_target "amdgcn-amd-amdhsa--gfx950"')
    out.append(".text")
    out += A.lines
    out.append('.section .rodata,"a"')
    for (name, vg, sg, acc) in KD:
        out.append(".p2align 6")
        out.append(".amdhsa_kernel %s" % name)
        out.append("  .amdhsa_next_free_vgpr %d" % vg)
        out.append("  .amdhsa_next_free_sgpr %d" % sg)
        out.append("  .amdhsa_accum_offset %d" % acc)
        out.append("  .amdhsa_group_segment_fixed_size 0")
        out.append("  .amdhsa_kernarg_size 120")
        out.append("  .amdhsa_user_sgpr_count 2")
        out.append("  .amdhsa_user_sgpr_kernarg_segment_ptr 1")
        out.append("  .amdhsa_system_sgpr_workgroup_id_x 1")
        out.append(".end_amdhsa_kernel")
    dst = sys.argv[1] if len(sys.argv) > 1 else "cdna_kernels/%s.s" % NAME
    open(dst, "w").write("\n".join(out) + "\n")
    print("wrote", dst, len(out), "lines")

if __name__ == "__main__":
    main()
```
